```python
import torch

def _softmax(x, axis=-1):
    return torch.softmax(x, dim=axis)
def _gelu(x):
    return torch.nn.functional.gelu(x, approximate="tanh")
def _silu(x):
    return torch.nn.functional.silu(x)
def _sigmoid(x):
    return torch.sigmoid(x)
def _layernorm(x, axis=-1, eps=1e-5):
    m = x.mean(dim=axis, keepdim=True)
    v = x.var(dim=axis, keepdim=True, unbiased=False)
    return (x - m) / torch.sqrt(v + eps)
def _scatter_add(tgt, idx, src, axis=0):
    return tgt.clone().index_add_(axis, idx, src)
def _segment_sum(src, seg, n):
    out = torch.zeros((n,) + src.shape[1:], dtype=src.dtype)
    return out.index_add_(0, seg, src)
def _pad(x, pw):
    flat = tuple(v for pair in reversed(pw) for v in pair)
    return torch.nn.functional.pad(x, flat)

kernel_name = 'sequential_preLN__mha_block_cached__swiglu_ffn__decode'

def setup_inputs():

    _w = (lambda a: (lambda t: t.to(torch.bfloat16) if t.is_floating_point() else t)(torch.as_tensor(a)))
    def _A_setup():
        B, Sq, D = 2, 1, 512
        H, Sk, Dh = 32, 16384, 128
        return {
            "x": _w((lambda *s: torch.randn(*s, dtype=torch.bfloat16) * 0.05)(B, Sq, D)),
            "k_cache": _w((lambda *s: torch.randn(*s, dtype=torch.bfloat16) * 3.2)(B, H, Sk, Dh)),
            "v_cache": _w((lambda *s: torch.randn(*s, dtype=torch.bfloat16) * 0.4)(B, H, Sk, Dh)),
            "wq": _w((lambda *s: torch.randn(*s, dtype=torch.bfloat16) * 3.2)(D, H * Dh) * (D ** -0.5)),
            "wo": _w((lambda *s: torch.randn(*s, dtype=torch.bfloat16) * 0.4)(H * Dh, D) * ((H * Dh) ** -0.5)),
        }
    _A_in = _A_setup()

    def _B_setup():
        B, S, D, F = 2, 1, 512, 1792
        return {
            "x": _w((lambda *s: torch.randn(*s, dtype=torch.bfloat16) * 0.05)(B, S, D)),
            "w_gate": _w((lambda *s: torch.randn(*s, dtype=torch.bfloat16) * 0.05)(D, F)),
            "w_up": _w((lambda *s: torch.randn(*s, dtype=torch.bfloat16) * 0.05)(D, F)),
            "w_down": _w((lambda *s: torch.randn(*s, dtype=torch.bfloat16) * 0.05)(F, D)),
        }
    _B_in = _B_setup()

    return {
        "A_x": _A_in["x"],
        "A_k_cache": _A_in["k_cache"],
        "A_v_cache": _A_in["v_cache"],
        "A_wq": _A_in["wq"],
        "A_wo": _A_in["wo"],
        "B_x": _B_in["x"],
        "B_w_gate": _B_in["w_gate"],
        "B_w_up": _B_in["w_up"],
        "B_w_down": _B_in["w_down"],
    }

def reference(A_x, A_k_cache, A_v_cache, A_wq, A_wo, B_x, B_w_gate, B_w_up, B_w_down):
    def _A_ref(x, k_cache, v_cache, wq, wo):
        B, Sq, D = x.shape
        H, Dh = 32, 128
        q = (lambda x, *d: x.permute(*d))((x @ wq).reshape(B, Sq, H, Dh), 0, 2, 1, 3)
        scores = torch.einsum("bhqd,bhkd->bhqk", q, k_cache) * (Dh ** -0.5)
        p = _softmax(scores, axis=-1)
        o = torch.einsum("bhqk,bhkd->bhqd", p, v_cache)
        return (lambda x, *d: x.permute(*d))(o, 0, 2, 1, 3).reshape(B, Sq, H * Dh) @ wo

    def _B_ref(x, w_gate, w_up, w_down):
        g = _silu(x @ w_gate)
        u = x @ w_up
        return (g * u) @ w_down

    x = A_x
    h = x + _A_ref(_layernorm(x, axis=-1), A_k_cache, A_v_cache, A_wq, A_wo)
    h2 = h + _B_ref(_layernorm(h, axis=-1), B_w_gate, B_w_up, B_w_down)
    return h2
```

```python
import sys

NAME = "sequential_preLN__mha_block_cached__swiglu_ffn__decode"
OUT = f"cdna_kernels/{NAME}.s"

L = []


def e(s=""):
    L.append(s)


def nop(n):
    e(f"  s_nop {n-1}")


LOG2E = 0x3FB8AA3B
SCALE = 0x3DB504F3
EPS = 0x3727C5AC

WS_P = 0
WS_Y = 262144
WS_H = 393216
WS_ACT = 397312
WS_SIZE = 1 << 20

KV_FLAGS = " nt"


def srd(d, lo, hi, nbytes):
    e(f"  s_mov_b32 s{d}, s{lo}")
    e(f"  s_and_b32 s{d+1}, s{hi}, 0xffff")
    e(f"  s_mov_b32 s{d+2}, {nbytes}")
    e(f"  s_mov_b32 s{d+3}, 0x00020000")


def srd_off(d, lo, hi, soff, nbytes):
    e(f"  s_add_u32 s{d}, s{lo}, s{soff}")
    e(f"  s_addc_u32 s{d+1}, s{hi}, 0")
    e(f"  s_and_b32 s{d+1}, s{d+1}, 0xffff")
    e(f"  s_mov_b32 s{d+2}, {nbytes}")
    e(f"  s_mov_b32 s{d+3}, 0x00020000")


def bf16_round(dst_list, src_list, tmp):
    assert len(src_list) % 2 == 0
    n = len(src_list) // 2
    for i in range(n):
        e(f"  v_cvt_pk_bf16_f32 v{tmp+i}, v{src_list[2*i]}, v{src_list[2*i+1]}")
    for i in range(n):
        e(f"  v_lshlrev_b32 v{dst_list[2*i]}, 16, v{tmp+i}")
        e(f"  v_and_b32 v{dst_list[2*i+1]}, 0xffff0000, v{tmp+i}")


def wave_sum_all(v, stmp):
    for ctl in ("quad_perm:[1,0,3,2]", "quad_perm:[2,3,0,1]", "row_half_mirror", "row_mirror"):
        nop(2)
        e(f"  v_add_f32_dpp v{v}, v{v}, v{v} {ctl} row_mask:0xf bank_mask:0xf")
    nop(2)
    for i in range(4):
        e(f"  v_readlane_b32 s{stmp+i}, v{v}, {16*i}")
    nop(3)
    e(f"  v_mov_b32 v{v}, s{stmp}")
    e(f"  v_add_f32 v{v}, s{stmp+1}, v{v}")
    e(f"  v_add_f32 v{v}, s{stmp+2}, v{v}")
    e(f"  v_add_f32 v{v}, s{stmp+3}, v{v}")


def layernorm8(x, t, stmp, outpk):
    xs = [x + i for i in range(8)]
    s = t
    e(f"  v_add_f32 v{s}, v{xs[0]}, v{xs[1]}")
    for i in range(2, 8):
        e(f"  v_add_f32 v{s}, v{s}, v{xs[i]}")
    wave_sum_all(s, stmp)
    e(f"  v_mul_f32 v{s}, 0x3b000000, v{s}")
    d = t + 1
    q = t + 2
    e(f"  v_sub_f32 v{d}, v{xs[0]}, v{s}")
    e(f"  v_mul_f32 v{q}, v{d}, v{d}")
    for i in range(1, 8):
        e(f"  v_sub_f32 v{d}, v{xs[i]}, v{s}")
        e(f"  v_fmac_f32 v{q}, v{d}, v{d}")
    wave_sum_all(q, stmp)
    e(f"  v_mul_f32 v{q}, 0x3b000000, v{q}")
    bf16_round([s, q], [s, q], t + 3)
    e(f"  v_add_f32 v{q}, {EPS:#x}, v{q}")
    bf16_round([q, d], [q, q], t + 3)
    e(f"  v_sqrt_f32 v{q}, v{q}")
    nop(1)
    bf16_round([q, d], [q, q], t + 3)
    e(f"  v_rcp_f32 v{d}, v{q}")
    nop(1)
    e(f"  v_fma_f32 v{t+3}, -v{q}, v{d}, 2.0")
    e(f"  v_mul_f32 v{d}, v{d}, v{t+3}")
    dd = [t + 4 + i for i in range(8)]
    for i in range(8):
        e(f"  v_sub_f32 v{dd[i]}, v{xs[i]}, v{s}")
    bf16_round(dd, dd, x)
    for i in range(8):
        e(f"  v_mul_f32 v{dd[i]}, v{dd[i]}, v{d}")
    for i in range(4):
        e(f"  v_cvt_pk_bf16_f32 v{x+i}, v{dd[2*i]}, v{dd[2*i+1]}")
    for i in range(4):
        e(f"  v_and_b32 v{outpk+2*i}, 0xffff, v{x+i}")
        e(f"  v_lshrrev_b32 v{outpk+2*i+1}, 16, v{x+i}")


def unpack8(dst, src):
    for i in range(4):
        e(f"  v_lshlrev_b32 v{dst+2*i}, 16, v{src+i}")
        e(f"  v_and_b32 v{dst+2*i+1}, 0xffff0000, v{src+i}")


def kernel_header(name):
    e(f".globl {name}")
    e(".p2align 8")
    e(f".type {name},@function")
    e(f"{name}:")


def kernel_desc(name, vgpr, sgpr=102):
    e(f".amdhsa_kernel {name}")
    e(f"  .amdhsa_next_free_vgpr {vgpr}")
    e(f"  .amdhsa_next_free_sgpr {sgpr}")
    e(f"  .amdhsa_accum_offset {((vgpr+3)//4)*4}")
    e("  .amdhsa_group_segment_fixed_size 0")
    e("  .amdhsa_kernarg_size 96")
    e("  .amdhsa_user_sgpr_count 2")
    e("  .amdhsa_user_sgpr_kernarg_segment_ptr 1")
    e("  .amdhsa_system_sgpr_workgroup_id_x 1")
    e("  .amdhsa_float_denorm_mode_32 3")
    e(".end_amdhsa_kernel")


def gen_attn(name):
    KA, KB, VA, VB = 16, 48, 80, 112
    Q = 4
    S = 144
    PL = 152
    PH = 160
    O = 168
    M, LS = 176, 177
    T = 178
    L_XN = 0
    L_QP = 2048
    L_QB = 18432
    L_ML = 18688
    L_FLAG = 18944
    L_OF = 19200

    kernel_header(name)
    e("  s_cmp_ge_u32 s2, 256")
    e("  s_cbranch_scc1 L1_end")
    e("  s_load_dwordx8 s[4:11], s[0:1], 0")
    e("  s_load_dwordx2 s[12:13], s[0:1], 32")
    e("  s_load_dwordx4 s[16:19], s[0:1], 80")
    e("  v_and_b32 v1, 63, v0")
    e("  v_lshrrev_b32 v8, 6, v0")
    e("  v_lshlrev_b32 v2, 4, v1")
    e("  v_readfirstlane_b32 s52, v8")
    e("  v_add_u32 v3, 0x1000, v2")
    e("  s_lshr_b32 s48, s2, 2")
    e("  s_and_b32 s49, s2, 3")
    e("  s_lshr_b32 s50, s48, 5")
    e("  s_and_b32 s51, s48, 31")
    e("  s_mov_b32 s56, %#x" % SCALE)
    e("  s_mov_b32 s57, %#x" % LOG2E)
    e("  s_lshl_b32 s53, s52, 13")
    e("  s_waitcnt lgkmcnt(0)")
    e("  s_lshl_b32 s55, s2, 20")
    srd_off(20, 6, 7, 55, 0x100000)
    srd_off(24, 8, 9, 55, 0x100000)
    e("  s_lshl_b32 s55, s51, 8")
    srd_off(28, 10, 11, 55, 4194304 - 31 * 256 - 0)
    e("  s_sub_u32 s30, 4194304, s55")
    e("  s_lshl_b32 s55, s51, 17")
    srd_off(32, 12, 13, 55, 131072)
    e("  s_lshl_b32 s55, s50, 10")
    srd_off(36, 4, 5, 55, 1024)
    srd(40, 18, 19, WS_SIZE)
    srd(44, 16, 17, 256)

    def load_tile(buf, rs):
        for j in range(8):
            vo = "v2" if j < 4 else "v3"
            e(f"  buffer_load_dwordx4 v[{buf+4*j}:{buf+4*j+3}], {vo}, s[{rs}:{rs+3}], s53 offen offset:{(j%4)*1024}{KV_FLAGS}")

    load_tile(KA, 20)
    load_tile(VA, 24)
    e("  s_add_u32 s53, s53, 0x10000")
    e("  buffer_load_dwordx4 v[8:11], v2, s[36:39], 0 offen")
    e("  v_lshrrev_b32 v12, 4, v0")
    e("  v_and_b32 v13, 15, v0")
    e("  v_lshlrev_b32 v14, 13, v12")
    e("  v_lshl_add_u32 v14, v13, 4, v14")
    wqregs = [KB + 4 * i for i in range(8)] + [VB + 4 * i for i in range(8)]
    for i in range(16):
        e(f"  s_mov_b32 s55, {i*262144}")
        e(f"  buffer_load_dwordx4 v[{wqregs[i]}:{wqregs[i]+3}], v14, s[28:31], s55 offen")
    e("  s_waitcnt vmcnt(16)")
    unpack8(S, 8)
    layernorm8(S, T, 58, PL)
    e("  s_cmp_lg_u32 s52, 0")
    e("  s_cbranch_scc1 L1_skipxn")
    e("  v_lshlrev_b32 v15, 5, v1")
    e(f"  ds_write_b128 v15, v[{PL}:{PL+3}] offset:{L_XN}")
    e(f"  ds_write_b128 v15, v[{PL+4}:{PL+7}] offset:{L_XN+16}")
    e("  s_waitcnt lgkmcnt(0)")
    e("L1_skipxn:")
    e("  s_barrier")
    e("  v_lshlrev_b32 v15, 2, v12")
    for i in range(16):
        e(f"  ds_read_b32 v{S+i}, v15 offset:{L_XN + 128*i}")
    for i in range(8):
        e(f"  v_mov_b32 v{O+i}, 0")
    e("  s_waitcnt lgkmcnt(0)")
    e("  s_waitcnt vmcnt(0)")
    for i in range(16):
        e(f"  v_lshlrev_b32 v{T}, 16, v{S+i}")
        for c in range(4):
            e(f"  v_dot2_f32_bf16 v{O+2*c}, v{wqregs[i]+c}, v{S+i}, v{O+2*c}")
        for c in range(4):
            e(f"  v_dot2_f32_bf16 v{O+2*c+1}, v{wqregs[i]+c}, v{T}, v{O+2*c+1}")
        nop(3)
    e("  v_lshlrev_b32 v15, 5, v0")
    e(f"  ds_write_b128 v15, v[{O}:{O+3}] offset:{L_QP}")
    e(f"  ds_write_b128 v15, v[{O+4}:{O+7}] offset:{L_QP+16}")
    e("  s_waitcnt lgkmcnt(0)")
    e("  s_barrier")
    e("  s_cmp_ge_u32 s52, 2")
    e("  s_cbranch_scc1 L1_skipq")
    e("  v_lshlrev_b32 v15, 2, v0")
    for r in range(32):
        e(f"  ds_read_b32 v{KB+r}, v15 offset:{L_QP + 512*r}")
    e("  s_waitcnt lgkmcnt(0)")
    for r in range(16):
        e(f"  v_add_f32 v{KB+r}, v{KB+r}, v{KB+16+r}")
    for r in range(8):
        e(f"  v_add_f32 v{KB+r}, v{KB+r}, v{KB+8+r}")
    for r in range(4):
        e(f"  v_add_f32 v{KB+r}, v{KB+r}, v{KB+4+r}")
    for r in range(2):
        e(f"  v_add_f32 v{KB+r}, v{KB+r}, v{KB+2+r}")
    e(f"  v_add_f32 v{KB}, v{KB}, v{KB+1}")
    e(f"  v_cvt_pk_bf16_f32 v{KB}, v{KB}, v{KB}")
    e("  v_lshlrev_b32 v15, 1, v0")
    e(f"  ds_write_b16 v15, v{KB} offset:{L_QB}")
    e("  s_waitcnt lgkmcnt(0)")
    e("L1_skipq:")
    e("  s_barrier")
    e("  v_and_b32 v15, 15, v1")
    e("  v_lshlrev_b32 v15, 4, v15")
    e(f"  ds_read_b128 v[{Q}:{Q+3}], v15 offset:{L_QB}")
    for i in range(8):
        e(f"  v_mov_b32 v{O+i}, 0")
    e(f"  v_mov_b32 v{M}, 0xff800000")
    e(f"  v_mov_b32 v{LS}, 0")
    e("  s_mov_b32 s54, 0")
    e("  s_waitcnt lgkmcnt(0)")

    def half(Kc, Vc, Kn, Vn):
        load_tile(Kn, 20)
        e("  s_waitcnt vmcnt(16)")
        for c in range(4):
            for j in range(8):
                src = "0" if c == 0 else f"v{S+j}"
                e(f"  v_dot2_f32_bf16 v{S+j}, v{Kc+4*j+c}, v{Q+c}, {src}")
        for ctl in ("quad_perm:[1,0,3,2]", "quad_perm:[2,3,0,1]", "row_half_mirror", "row_mirror"):
            for j in range(8):
                e(f"  v_add_f32_dpp v{S+j}, v{S+j}, v{S+j} {ctl} row_mask:0xf bank_mask:0xf")
        ss = [S + j for j in range(8)]
        bf16_round(ss, ss, PL)
        for j in range(8):
            e(f"  v_mul_f32 v{S+j}, s56, v{S+j}")
        bf16_round(ss, ss, PL)
        load_tile(Vn, 24)
        e("  s_add_u32 s53, s53, 0x10000")
        e(f"  v_max3_f32 v{T}, v{S}, v{S+1}, v{S+2}")
        e(f"  v_max3_f32 v{T+1}, v{S+3}, v{S+4}, v{S+5}")
        e(f"  v_max3_f32 v{T+2}, v{S+6}, v{S+7}, v{M}")
        e(f"  v_max3_f32 v{T}, v{T}, v{T+1}, v{T+2}")
        e(f"  v_mul_f32 v{T+1}, s57, v{T}")
        e(f"  v_fma_f32 v{T+2}, v{M}, s57, -v{T+1}")
        e(f"  v_mov_b32 v{M}, v{T}")
        e(f"  v_exp_f32 v{T+2}, v{T+2}")
        for j in range(8):
            e(f"  v_fma_f32 v{S+j}, v{S+j}, s57, -v{T+1}")
        for j in range(8):
            e(f"  v_exp_f32 v{S+j}, v{S+j}")
        e(f"  v_mul_f32 v{LS}, v{LS}, v{T+2}")
        for i in range(8):
            e(f"  v_mul_f32 v{O+i}, v{O+i}, v{T+2}")
        for j in range(8):
            e(f"  v_cvt_pk_bf16_f32 v{PL+j}, v{S+j}, 0")
            e(f"  v_cvt_pk_bf16_f32 v{PH+j}, 0, v{S+j}")
        e(f"  v_add_f32 v{T}, v{S}, v{S+1}")
        e(f"  v_add_f32 v{T+1}, v{S+2}, v{S+3}")
        e(f"  v_add_f32 v{T+3}, v{S+4}, v{S+5}")
        e(f"  v_add_f32 v{T+4}, v{S+6}, v{S+7}")
        e(f"  v_add_f32 v{T}, v{T}, v{T+1}")
        e(f"  v_add_f32 v{T+3}, v{T+3}, v{T+4}")
        e(f"  v_add_f32 v{T}, v{T}, v{T+3}")
        e(f"  v_add_f32 v{LS}, v{LS}, v{T}")
        e("  s_waitcnt vmcnt(16)")
        for j in range(8):
            for c in range(4):
                e(f"  v_dot2_f32_bf16 v{O+2*c}, v{Vc+4*j+c}, v{PL+j}, v{O+2*c}")
                e(f"  v_dot2_f32_bf16 v{O+2*c+1}, v{Vc+4*j+c}, v{PH+j}, v{O+2*c+1}")

    e("L1_loop:")
    half(KA, VA, KB, VB)
    nop(3)
    half(KB, VB, KA, VA)
    e("  s_add_u32 s54, s54, 1")
    e("  s_cmp_lt_u32 s54, 8")
    e("  s_cbranch_scc1 L1_loop")

    e("  s_waitcnt vmcnt(0)")
    e("  s_lshl_b32 s55, s52, 10")
    for i in range(16):
        e(f"  buffer_load_dwordx4 v[{16+4*i}:{19+4*i}], v2, s[32:35], s55 offen")
        e(f"  s_add_u32 s55, s55, 8192")
    e("  v_lshlrev_b32 v15, 5, v0")
    e(f"  ds_write_b128 v15, v[{O}:{O+3}] offset:{L_QP}")
    e(f"  ds_write_b128 v15, v[{O+4}:{O+7}] offset:{L_QP+16}")
    e("  v_and_b32 v14, 15, v0")
    e("  v_cmp_eq_u32 vcc, 0, v14")
    e("  v_lshrrev_b32 v15, 4, v0")
    e("  v_lshlrev_b32 v15, 3, v15")
    e("  s_and_saveexec_b64 s[60:61], vcc")
    e(f"  ds_write_b64 v15, v[{M}:{M+1}] offset:{L_ML}")
    e("  s_mov_b64 exec, s[60:61]")
    e("  s_waitcnt lgkmcnt(0)")
    e("  s_barrier")
    e("  s_cmp_ge_u32 s52, 2")
    e("  s_cbranch_scc1 L1_skipc")
    e("  v_mov_b32 v15, 0")
    for i in range(32):
        e(f"  ds_read_b64 v[{80+2*i}:{81+2*i}], v15 offset:{L_ML+8*i}")
    e("  v_lshlrev_b32 v15, 2, v0")
    e("  s_waitcnt lgkmcnt(0)")
    e(f"  v_max3_f32 v{T}, v80, v82, v84")
    for i in range(3, 31, 2):
        e(f"  v_max3_f32 v{T}, v{T}, v{80+2*i}, v{82+2*i}")
    e(f"  v_max_f32 v{T}, v{T}, v{80+62}")
    e(f"  v_mul_f32 v{T+1}, s57, v{T}")
    for i in range(32):
        e(f"  v_fma_f32 v{80+2*i}, v{80+2*i}, s57, -v{T+1}")
    for i in range(32):
        e(f"  v_exp_f32 v{80+2*i}, v{80+2*i}")
    for i in range(32):
        e(f"  ds_read_b32 v{144+i}, v15 offset:{L_QP+512*i}")
    e(f"  v_mov_b32 v{T+2}, 0")
    for i in range(32):
        e(f"  v_fmac_f32 v{T+2}, v{80+2*i}, v{81+2*i}")
    e(f"  v_mov_b32 v{T+3}, 0")
    e("  s_waitcnt lgkmcnt(0)")
    for i in range(32):
        e(f"  v_fmac_f32 v{T+3}, v{80+2*i}, v{144+i}")
    e("  s_lshl_b32 s55, s2, 10")
    e(f"  buffer_store_dword v{T+3}, v15, s[40:43], s55 offen sc1")
    e(f"  v_mov_b32 v{T+1}, v{T+2}")
    e("  v_cmp_eq_u32 vcc, 0, v0")
    e("  s_and_saveexec_b64 s[60:61], vcc")
    e(f"  buffer_store_dwordx2 v[{T}:{T+1}], v15, s[40:43], s55 offen offset:512 sc1")
    e("  s_mov_b64 exec, s[60:61]")
    e("  s_waitcnt vmcnt(0)")
    e("L1_skipc:")
    e("  s_barrier")
    e("  s_cmp_lg_u32 s52, 0")
    e("  s_cbranch_scc1 L1_skipa")
    e("  v_mov_b32 v14, 1")
    e("  v_mov_b32 v15, 0")
    e("  s_lshl_b32 s55, s48, 2")
    e("  v_cmp_eq_u32 vcc, 0, v0")
    e("  s_and_saveexec_b64 s[60:61], vcc")
    e("  buffer_atomic_add v14, v15, s[44:47], s55 offen sc0 sc1")
    e("  s_waitcnt vmcnt(0)")
    e(f"  ds_write_b32 v15, v14 offset:{L_FLAG}")
    e("  s_mov_b64 exec, s[60:61]")
    e("  s_waitcnt lgkmcnt(0)")
    e("L1_skipa:")
    e("  s_barrier")
    e("  v_mov_b32 v15, 0")
    e(f"  ds_read_b32 v14, v15 offset:{L_FLAG}")
    e("  s_waitcnt lgkmcnt(0)")
    e("  v_readfirstlane_b32 s55, v14")
    e("  s_cmp_lg_u32 s55, 3")
    e("  s_cbranch_scc1 L1_end")
    e("  s_cmp_ge_u32 s52, 2")
    e("  s_cbranch_scc1 L1_skipf")
    e("  s_lshl_b32 s55, s48, 12")
    e("  v_lshlrev_b32 v15, 2, v0")
    e("  v_mov_b32 v14, 0")
    for s in range(4):
        e(f"  buffer_load_dword v{144+s}, v15, s[40:43], s55 offen offset:{1024*s} sc1")
        e(f"  buffer_load_dwordx2 v[{148+2*s}:{149+2*s}], v14, s[40:43], s55 offen offset:{1024*s+512} sc1")
    e("  s_waitcnt vmcnt(0)")
    e(f"  v_max3_f32 v{T}, v148, v150, v152")
    e(f"  v_max_f32 v{T}, v{T}, v154")
    e(f"  v_mul_f32 v{T+1}, s57, v{T}")
    for s in range(4):
        e(f"  v_fma_f32 v{148+2*s}, v{148+2*s}, s57, -v{T+1}")
    for s in range(4):
        e(f"  v_exp_f32 v{148+2*s}, v{148+2*s}")
    nop(1)
    e(f"  v_mul_f32 v{T+2}, v148, v149")
    e(f"  v_mul_f32 v{T+3}, v148, v144")
    for s in range(1, 4):
        e(f"  v_fmac_f32 v{T+2}, v{148+2*s}, v{149+2*s}")
        e(f"  v_fmac_f32 v{T+3}, v{148+2*s}, v{144+s}")
    e(f"  v_rcp_f32 v{T+4}, v{T+2}")
    nop(1)
    e(f"  v_fma_f32 v{T+5}, -v{T+2}, v{T+4}, 2.0")
    e(f"  v_mul_f32 v{T+4}, v{T+4}, v{T+5}")
    e(f"  v_mul_f32 v{T+3}, v{T+3}, v{T+4}")
    e(f"  v_cvt_pk_bf16_f32 v{T+3}, v{T+3}, 0")
    e(f"  ds_write_b32 v15, v{T+3} offset:{L_OF}")
    e("  s_waitcnt lgkmcnt(0)")
    e("L1_skipf:")
    e("  s_barrier")
    e("  s_lshl_b32 s55, s52, 2")
    e("  v_mov_b32 v15, s55")
    for i in range(16):
        e(f"  ds_read_b32 v{144+i}, v15 offset:{L_OF+32*i}")
    for i in range(8):
        e(f"  v_mov_b32 v{O+i}, 0")
    e("  s_waitcnt lgkmcnt(0) vmcnt(0)")
    for i in range(16):
        e(f"  v_lshlrev_b32 v{T}, 16, v{144+i}")
        for c in range(4):
            e(f"  v_dot2_f32_bf16 v{O+2*c}, v{16+4*i+c}, v{144+i}, v{O+2*c}")
        for c in range(4):
            e(f"  v_dot2_f32_bf16 v{O+2*c+1}, v{16+4*i+c}, v{T}, v{O+2*c+1}")
        nop(3)
    e("  v_lshlrev_b32 v15, 5, v0")
    e(f"  ds_write_b128 v15, v[{O}:{O+3}] offset:{L_QP}")
    e(f"  ds_write_b128 v15, v[{O+4}:{O+7}] offset:{L_QP+16}")
    e("  s_waitcnt lgkmcnt(0)")
    e("  s_barrier")
    e("  v_lshlrev_b32 v15, 2, v0")
    for w in range(8):
        e(f"  ds_read_b32 v{144+w}, v15 offset:{L_QP+2048*w}")
    e("  s_waitcnt lgkmcnt(0)")
    for w in range(4):
        e(f"  v_add_f32 v{144+w}, v{144+w}, v{148+w}")
    e("  v_add_f32 v144, v144, v146")
    e("  v_add_f32 v145, v145, v147")
    e("  v_add_f32 v144, v144, v145")
    e("  s_lshl_b32 s55, s48, 11")
    e(f"  s_add_u32 s55, s55, {WS_Y}")
    e("  buffer_store_dword v144, v15, s[40:43], s55 offen")
    e("L1_end:")
    e("  s_endpgm")


def gen_ffn1(name):
    G, U = 16, 32
    Y = 48
    AG = 112
    T = 144
    L_YP = 0
    L_H = 8192
    L_HN = 12288
    L_R = 16384
    kernel_header(name)
    e("  s_cmp_ge_u32 s2, 56")
    e("  s_cbranch_scc1 L2_end")
    e("  s_load_dwordx2 s[4:5], s[0:1], 0")
    e("  s_load_dwordx4 s[8:11], s[0:1], 48")
    e("  s_load_dwordx2 s[18:19], s[0:1], 88")
    e("  v_and_b32 v1, 63, v0")
    e("  v_lshrrev_b32 v8, 6, v0")
    e("  v_and_b32 v9, 3, v0")
    e("  v_readfirstlane_b32 s52, v8")
    e("  v_lshrrev_b32 v10, 2, v0")
    e("  s_movk_i32 s55, 3584")
    e("  v_mul_lo_u32 v11, v10, s55")
    e("  v_lshl_add_u32 v11, v9, 4, v11")
    e("  s_waitcnt lgkmcnt(0)")
    e("  s_lshl_b32 s55, s2, 6")
    srd_off(20, 8, 9, 55, 0)
    e("  s_sub_u32 s22, %d, s55" % (512 * 3584))
    srd_off(24, 10, 11, 55, 0)
    e("  s_sub_u32 s26, %d, s55" % (512 * 3584))
    srd(36, 4, 5, 2048)
    srd(40, 18, 19, WS_SIZE)
    for i in range(4):
        e(f"  s_mov_b32 s55, {i*128*3584}")
        e(f"  buffer_load_dwordx4 v[{G+4*i}:{G+4*i+3}], v11, s[20:23], s55 offen")
        e(f"  buffer_load_dwordx4 v[{U+4*i}:{U+4*i+3}], v11, s[24:27], s55 offen")
    e("  v_and_b32 v12, 127, v0")
    e("  v_lshrrev_b32 v13, 7, v0")
    e("  v_lshlrev_b32 v14, 15, v13")
    e("  v_lshl_add_u32 v14, v12, 4, v14")
    for j in range(16):
        e(f"  s_mov_b32 s55, {WS_Y + j*2048}")
        e(f"  buffer_load_dwordx4 v[{Y+4*j}:{Y+4*j+3}], v14, s[40:43], s55 offen")
    e("  v_lshlrev_b32 v15, 1, v0")
    e(f"  buffer_load_ushort v{T}, v15, s[36:39], 0 offen")
    e(f"  buffer_load_ushort v{T+1}, v15, s[36:39], 0 offen offset:1024")
    e("  s_waitcnt vmcnt(2)")
    for st in (8, 4, 2, 1):
        for j in range(st):
            for c in range(4):
                e(f"  v_add_f32 v{Y+4*j+c}, v{Y+4*j+c}, v{Y+4*(j+st)+c}")
    e("  v_lshlrev_b32 v14, 11, v13")
    e("  v_lshl_add_u32 v14, v12, 4, v14")
    e(f"  ds_write_b128 v14, v[{Y}:{Y+3}] offset:{L_YP}")
    e("  s_waitcnt lgkmcnt(0)")
    e("  s_barrier")
    e("  v_lshlrev_b32 v15, 2, v0")
    for r in range(4):
        e(f"  ds_read_b32 v{Y+r}, v15 offset:{L_YP+2048*r}")
    e("  s_waitcnt lgkmcnt(0) vmcnt(0)")
    e(f"  v_add_f32 v{Y}, v{Y}, v{Y+1}")
    e(f"  v_add_f32 v{Y+1}, v{Y+2}, v{Y+3}")
    bf16_round([Y, Y + 1], [Y, Y + 1], Y + 2)
    e(f"  v_lshlrev_b32 v{T}, 16, v{T}")
    e(f"  v_lshlrev_b32 v{T+1}, 16, v{T+1}")
    e(f"  v_add_f32 v{Y}, v{Y}, v{T}")
    e(f"  v_add_f32 v{Y+1}, v{Y+1}, v{T+1}")
    bf16_round([Y, Y + 1], [Y, Y + 1], Y + 2)
    e(f"  ds_write_b32 v15, v{Y} offset:{L_H}")
    e(f"  ds_write_b32 v15, v{Y+1} offset:{L_H+2048}")
    e("  s_cmp_lg_u32 s2, 0")
    e("  s_cbranch_scc1 L2_skiph")
    e(f"  s_mov_b32 s55, {WS_H}")
    e(f"  buffer_store_dword v{Y}, v15, s[40:43], s55 offen")
    e(f"  buffer_store_dword v{Y+1}, v15, s[40:43], s55 offen offset:2048")
    e("L2_skiph:")
    e("  s_waitcnt lgkmcnt(0)")
    e("  s_barrier")
    e("  v_lshlrev_b32 v15, 5, v1")
    for b in range(2):
        e(f"  ds_read_b128 v[{Y+8*b}:{Y+8*b+3}], v15 offset:{L_H+2048*b}")
        e(f"  ds_read_b128 v[{Y+8*b+4}:{Y+8*b+7}], v15 offset:{L_H+2048*b+16}")
    e("  s_waitcnt lgkmcnt(0)")
    layernorm8(Y, Y + 32, 58, Y + 16)
    layernorm8(Y + 8, Y + 32, 58, Y + 24)
    e("  s_cmp_lg_u32 s52, 0")
    e("  s_cbranch_scc1 L2_skiphn")
    for b in range(2):
        e(f"  ds_write_b128 v15, v[{Y+16+8*b}:{Y+16+8*b+3}] offset:{L_HN+2048*b}")
        e(f"  ds_write_b128 v15, v[{Y+16+8*b+4}:{Y+16+8*b+7}] offset:{L_HN+2048*b+16}")
    e("  s_waitcnt lgkmcnt(0)")
    e("L2_skiphn:")
    e("  s_barrier")
    e("  v_lshlrev_b32 v15, 2, v10")
    for b in range(2):
        for i in range(4):
            e(f"  ds_read_b32 v{Y+4*b+i}, v15 offset:{L_HN+2048*b+512*i}")
    for i in range(32):
        e(f"  v_mov_b32 v{AG+i}, 0")
    e("  s_waitcnt lgkmcnt(0)")
    for k in range(8):
        e(f"  v_lshlrev_b32 v{Y+8+k}, 16, v{Y+k}")
    nop(2)
    for i in range(4):
        for m, W in ((0, G), (1, U)):
            for b in range(2):
                acc = AG + 16 * m + 8 * b
                for c in range(4):
                    e(f"  v_dot2_f32_bf16 v{acc+2*c}, v{W+4*i+c}, v{Y+4*b+i}, v{acc+2*c}")
                for c in range(4):
                    e(f"  v_dot2_f32_bf16 v{acc+2*c+1}, v{W+4*i+c}, v{Y+8+4*b+i}, v{acc+2*c+1}")
    nop(3)
    for ctl in ("row_ror:4", "row_ror:8"):
        for i in range(32):
            e(f"  v_add_f32_dpp v{AG+i}, v{AG+i}, v{AG+i} {ctl} row_mask:0xf bank_mask:0xf")
    e("  v_lshrrev_b32 v14, 4, v0")
    e("  v_lshlrev_b32 v14, 9, v14")
    e("  v_lshl_add_u32 v14, v9, 5, v14")
    e("  v_and_b32 v15, 15, v0")
    e("  v_cmp_gt_u32 vcc, 4, v15")
    e("  s_and_saveexec_b64 s[60:61], vcc")
    for q in range(4):
        e(f"  ds_write_b128 v14, v[{AG+8*q}:{AG+8*q+3}] offset:{L_R+128*q}")
        e(f"  ds_write_b128 v14, v[{AG+8*q+4}:{AG+8*q+7}] offset:{L_R+128*q+16}")
    e("  s_mov_b64 exec, s[60:61]")
    e("  s_waitcnt lgkmcnt(0)")
    e("  s_barrier")
    e("  s_cmp_lg_u32 s52, 0")
    e("  s_cbranch_scc1 L2_end")
    e("  v_lshlrev_b32 v15, 2, v0")
    for i in range(32):
        e(f"  ds_read_b32 v{Y+i}, v15 offset:{L_R+512*i}")
        e(f"  ds_read_b32 v{Y+32+i}, v15 offset:{L_R+512*i+256}")
    e("  s_waitcnt lgkmcnt(0)")
    for st in (16, 8, 4, 2, 1):
        for i in range(st):
            e(f"  v_add_f32 v{Y+i}, v{Y+i}, v{Y+i+st}")
            e(f"  v_add_f32 v{Y+32+i}, v{Y+32+i}, v{Y+32+i+st}")
    bf16_round([Y, Y + 32], [Y, Y + 32], T)
    e(f"  s_mov_b32 s55, {LOG2E:#x}")
    e(f"  v_mul_f32 v{T}, s55, v{Y}")
    e(f"  v_exp_f32 v{T}, -v{T}")
    nop(1)
    e(f"  v_add_f32 v{T}, 1.0, v{T}")
    e(f"  v_rcp_f32 v{T+1}, v{T}")
    nop(1)
    e(f"  v_fma_f32 v{T+2}, -v{T}, v{T+1}, 2.0")
    e(f"  v_mul_f32 v{T+1}, v{T+1}, v{T+2}")
    e(f"  v_mul_f32 v{Y}, v{Y}, v{T+1}")
    bf16_round([Y, Y + 1], [Y, Y], T)
    e(f"  v_mul_f32 v{Y}, v{Y}, v{Y+32}")
    e(f"  v_cvt_pk_bf16_f32 v{Y}, v{Y}, 0")
    e("  v_lshrrev_b32 v14, 5, v0")
    e("  s_movk_i32 s55, 7168")
    e("  v_mul_lo_u32 v14, v14, s55")
    e("  v_and_b32 v15, 31, v0")
    e("  v_lshl_add_u32 v14, v15, 2, v14")
    e("  s_lshl_b32 s55, s2, 7")
    e(f"  s_add_u32 s55, s55, {WS_ACT}")
    e(f"  buffer_store_dword v{Y}, v14, s[40:43], s55 offen")
    e("L2_end:")
    e("  s_endpgm")


def gen_ffn2(name):
    W = 16
    A = 72
    AC = 128
    T = 144
    L_R = 0
    kernel_header(name)
    e("  s_cmp_ge_u32 s2, 16")
    e("  s_cbranch_scc1 L3_end")
    e("  s_load_dwordx4 s[8:11], s[0:1], 64")
    e("  s_load_dwordx2 s[18:19], s[0:1], 88")
    e("  v_lshrrev_b32 v8, 6, v0")
    e("  v_and_b32 v9, 3, v0")
    e("  v_lshrrev_b32 v10, 2, v0")
    e("  v_readfirstlane_b32 s52, v8")
    e("  v_lshlrev_b32 v11, 10, v10")
    e("  v_lshl_add_u32 v11, v9, 4, v11")
    e("  s_waitcnt lgkmcnt(0)")
    e("  s_lshl_b32 s55, s2, 6")
    srd_off(20, 8, 9, 55, 0)
    e("  s_sub_u32 s22, %d, s55" % (1792 * 1024))
    srd(24, 10, 11, 2048)
    srd(40, 18, 19, WS_SIZE)
    for i in range(14):
        e(f"  s_mov_b32 s55, {i*131072}")
        e(f"  buffer_load_dwordx4 v[{W+4*i}:{W+4*i+3}], v11, s[20:23], s55 offen")
    e("  v_lshlrev_b32 v12, 2, v10")
    for b in range(2):
        for i in range(14):
            e(f"  s_mov_b32 s55, {WS_ACT + b*7168 + i*512}")
            e(f"  buffer_load_dword v{A+14*b+i}, v12, s[40:43], s55 offen")
    e("  v_lshrrev_b32 v13, 5, v0")
    e("  v_and_b32 v14, 31, v0")
    e("  v_lshlrev_b32 v13, 11, v13")
    e("  v_lshl_add_u32 v13, v14, 2, v13")
    e("  s_lshl_b32 s55, s2, 7")
    e(f"  s_add_u32 s55, s55, {WS_H}")
    e(f"  buffer_load_dword v{T}, v13, s[40:43], s55 offen")
    for i in range(16):
        e(f"  v_mov_b32 v{AC+i}, 0")
    e("  s_waitcnt vmcnt(0)")
    for k in range(28):
        e(f"  v_lshlrev_b32 v{A+28+k}, 16, v{A+k}")
    nop(2)
    for i in range(14):
        for b in range(2):
            acc = AC + 8 * b
            for c in range(4):
                e(f"  v_dot2_f32_bf16 v{acc+2*c}, v{W+4*i+c}, v{A+14*b+i}, v{acc+2*c}")
            for c in range(4):
                e(f"  v_dot2_f32_bf16 v{acc+2*c+1}, v{W+4*i+c}, v{A+28+14*b+i}, v{acc+2*c+1}")
    nop(3)
    for ctl in ("row_ror:4", "row_ror:8"):
        for i in range(16):
            e(f"  v_add_f32_dpp v{AC+i}, v{AC+i}, v{AC+i} {ctl} row_mask:0xf bank_mask:0xf")
    e("  v_lshrrev_b32 v14, 4, v0")
    e("  v_lshlrev_b32 v14, 8, v14")
    e("  v_lshl_add_u32 v14, v9, 5, v14")
    e("  v_and_b32 v15, 15, v0")
    e("  v_cmp_gt_u32 vcc, 4, v15")
    e("  s_and_saveexec_b64 s[60:61], vcc")
    for q in range(2):
        e(f"  ds_write_b128 v14, v[{AC+8*q}:{AC+8*q+3}] offset:{L_R+128*q}")
        e(f"  ds_write_b128 v14, v[{AC+8*q+4}:{AC+8*q+7}] offset:{L_R+128*q+16}")
    e("  s_mov_b64 exec, s[60:61]")
    e("  s_waitcnt lgkmcnt(0)")
    e("  s_barrier")
    e("  s_cmp_lg_u32 s52, 0")
    e("  s_cbranch_scc1 L3_end")
    e("  v_lshlrev_b32 v15, 2, v0")
    for i in range(32):
        e(f"  ds_read_b32 v{A+i}, v15 offset:{L_R+256*i}")
    e("  s_waitcnt lgkmcnt(0)")
    for st in (16, 8, 4, 2, 1):
        for i in range(st):
            e(f"  v_add_f32 v{A+i}, v{A+i}, v{A+i+st}")
    bf16_round([A, A + 1], [A, A], T + 1)
    e(f"  v_add_f32 v{A}, v{A}, v{T}")
    e(f"  v_cvt_pk_bf16_f32 v{A}, v{A}, 0")
    e("  v_lshrrev_b32 v13, 5, v0")
    e("  v_and_b32 v14, 31, v0")
    e("  v_lshlrev_b32 v13, 10, v13")
    e("  v_lshl_add_u32 v13, v14, 1, v13")
    e("  s_lshl_b32 s55, s2, 6")
    e(f"  buffer_store_short v{A}, v13, s[24:27], s55 offen")
    e("L3_end:")
    e("  s_endpgm")


def main():
    k1, k2, k3 = "attn_kernel", "ffn1_kernel", "ffn2_kernel"
    hdr = open(f"cdna_kernels/{NAME}.s.ref").read().split("\n")
    for line in hdr:
        if line.startswith("; @launch"):
            break
        e(line)
    e(f"; @launch kernel={k1} grid=(256,1,1) block=(512,1,1) lds=20480")
    e(f"; @launch kernel={k2} grid=(56,1,1) block=(512,1,1) lds=32768")
    e(f"; @launch kernel={k3} grid=(16,1,1) block=(512,1,1) lds=8192")
    e('.amdgcn_target "amdgcn-amd-amdhsa--gfx950"')
    e(".text")
    gen_attn(k1)
    gen_ffn1(k2)
    gen_ffn2(k3)
    e('.section .rodata,"a"')
    e(".p2align 6")
    kernel_desc(k1, 192)
    e(".p2align 6")
    kernel_desc(k2, 160)
    e(".p2align 6")
    kernel_desc(k3, 160)
    open(OUT, "w").write("\n".join(L) + "\n")


main()
```
